```python
import torch

def _softmax(x, axis=-1):
    return torch.softmax(x, dim=axis)
def _gelu(x):
    return torch.nn.functional.gelu(x, approximate="tanh")
def _silu(x):
    return torch.nn.functional.silu(x)
def _sigmoid(x):
    return torch.sigmoid(x)
def _layernorm(x, axis=-1, eps=1e-5):
    m = x.mean(dim=axis, keepdim=True)
    v = x.var(dim=axis, keepdim=True, unbiased=False)
    return (x - m) / torch.sqrt(v + eps)
def _scatter_add(tgt, idx, src, axis=0):
    return tgt.clone().index_add_(axis, idx, src)
def _segment_sum(src, seg, n):
    out = torch.zeros((n,) + src.shape[1:], dtype=src.dtype)
    return out.index_add_(0, seg, src)
def _pad(x, pw):
    flat = tuple(v for pair in reversed(pw) for v in pair)
    return torch.nn.functional.pad(x, flat)

kernel_name = 'gated_mix__sliding_block__swiglu_ffn__prompt'

def setup_inputs():

    _w = (lambda a: (lambda t: t.to(torch.bfloat16) if t.is_floating_point() else t)(torch.as_tensor(a)))
    def _A_setup():
        B, S, D = 1, 2048, 640
        return {
            "x": _w((lambda *s: torch.randn(*s, dtype=torch.bfloat16) * 0.05)(B, S, D)),
            "wqkv": _w((lambda *s: torch.randn(*s, dtype=torch.bfloat16) * 1.6)(D, 3 * D)),
            "wo": _w((lambda *s: torch.randn(*s, dtype=torch.bfloat16) * 0.05)(D, D)),
        }
    _A_in = _A_setup()

    def _B_setup():
        B, S, D, F = 1, 2048, 640, 1728
        return {
            "x": _w((lambda *s: torch.randn(*s, dtype=torch.bfloat16) * 0.05)(B, S, D)),
            "w_gate": _w((lambda *s: torch.randn(*s, dtype=torch.bfloat16) * 0.4)(D, F)),
            "w_up": _w((lambda *s: torch.randn(*s, dtype=torch.bfloat16) * 0.4)(D, F)),
            "w_down": _w((lambda *s: torch.randn(*s, dtype=torch.bfloat16) * 0.4)(F, D)),
        }
    _B_in = _B_setup()

    return {
        "A_x": _A_in["x"],
        "A_wqkv": _A_in["wqkv"],
        "A_wo": _A_in["wo"],
        "B_x": _B_in["x"],
        "B_w_gate": _B_in["w_gate"],
        "B_w_up": _B_in["w_up"],
        "B_w_down": _B_in["w_down"],
        "gate_w": _w((lambda *s: torch.randn(*s, dtype=torch.bfloat16) * 0.05)(640) * 16.0),
    }

def reference(A_x, A_wqkv, A_wo, B_x, B_w_gate, B_w_up, B_w_down, gate_w):
    def _A_ref(x, wqkv, wo):
        B, S, D = x.shape
        H = 32; Dh = D // H; W = 256
        qkv = (lambda x, *d: x.permute(*d))((x @ wqkv).reshape(B, S, 3, H, Dh), 2, 0, 3, 1, 4)
        q, k, v = qkv[0], qkv[1], qkv[2]
        scores = torch.einsum("bhqd,bhkd->bhqk", q, k) * (Dh ** -0.5)
        idx = torch.arange(S)
        mask = (idx[:, None] - idx[None, :] >= 0) & (idx[:, None] - idx[None, :] < W)
        scores = torch.where(mask[None, None], scores, -1e9)
        p = _softmax(scores, axis=-1)
        o = torch.einsum("bhqk,bhkd->bhqd", p, v)
        return (lambda x, *d: x.permute(*d))(o, 0, 2, 1, 3).reshape(B, S, D) @ wo

    def _B_ref(x, w_gate, w_up, w_down):
        g = _silu(x @ w_gate)
        u = x @ w_up
        return (g * u) @ w_down

    x = A_x
    g = _sigmoid((x * gate_w).sum(-1, keepdims=True))
    a = _A_ref(x, A_wqkv, A_wo)
    b = _B_ref(x, B_w_gate, B_w_up, B_w_down)
    return g * a + (1 - g) * b
```

```python
NAME="gated_mix__sliding_block__swiglu_ffn__prompt"
L=[]
def e(s): L.append("    "+s)
def lab(s): L.append(s+":")
QO,KO,VO=0,2621440,5242880
HO=7864320; OO=14942208; BO=17563648; GO=20185088
WS=268435456

def srd(d,lo,hi,size):
    e(f"s_mov_b32 s{d}, s{lo}"); e(f"s_and_b32 s{d+1}, s{hi}, 0xffff")
    e(f"s_mov_b32 s{d+2}, {size}"); e(f"s_mov_b32 s{d+3}, 0x20000")

ACC=64; FR=128
def gemm_core(p, MB, nk, lda):
    BM=MB*32; ASZ=BM*128; ST=ASZ+16384; NA=BM//32
    e("v_lshrrev_b32 v1, 6, v0"); e("v_and_b32 v2, 63, v0"); e("s_nop 0")
    e("v_readfirstlane_b32 s36, v1")
    e("v_lshrrev_b32 v3, 3, v2"); e("v_and_b32 v4, 7, v2")
    e(f"s_mul_i32 s37, s36, {BM//4}")
    e("v_xor_b32 v5, v4, v3"); e("v_lshlrev_b32 v5, 4, v5")
    e("v_add_u32 v6, s37, v3"); e(f"s_mov_b32 s27, {lda}"); e("v_mul_lo_u32 v6, v6, s27"); e("v_add_u32 v10, v6, v5")
    e("s_lshl_b32 s27, s36, 4"); e("v_add_u32 v6, s27, v3")
    e("v_and_b32 v7, 2, v3"); e("v_xor_b32 v7, v7, v4")
    e("v_mul_lo_u32 v8, v6, s30"); e("v_lshl_add_u32 v11, v7, 4, v8")
    e("v_add_u32 v6, 8, v6"); e("v_xor_b32 v7, 4, v7")
    e("v_mul_lo_u32 v8, v6, s30"); e("v_lshl_add_u32 v12, v7, 4, v8")
    e(f"s_mul_i32 s38, s36, {BM//4*128}")
    e(f"s_lshl_b32 s39, s36, 11"); e(f"s_add_u32 s39, s39, {ASZ}")
    e("s_lshl_b32 s40, s30, 6")
    e("s_lshr_b32 s34, s36, 1"); e("s_and_b32 s35, s36, 1")
    e("v_and_b32 v3, 15, v2"); e("v_lshrrev_b32 v4, 4, v2")
    e(f"s_mul_i32 s27, s34, {MB*16*128}")
    e("v_and_b32 v5, 7, v3"); e("v_xor_b32 v5, v5, v4"); e("v_lshlrev_b32 v5, 4, v5")
    e("v_lshl_add_u32 v5, v3, 7, v5"); e("v_add_u32 v13, s27, v5"); e("v_xor_b32 v14, 64, v13")
    e("v_lshrrev_b32 v5, 2, v3"); e("v_and_b32 v6, 3, v3")
    e("v_and_b32 v7, 2, v5"); e("v_and_b32 v8, 1, v4"); e("v_lshl_add_u32 v7, v8, 2, v7")
    e("v_lshl_add_u32 v8, v4, 3, v5"); e("v_lshlrev_b32 v8, 7, v8")
    e("v_and_b32 v9, 1, v6"); e("v_lshl_add_u32 v8, v9, 3, v8")
    e(f"v_add_u32 v8, {ASZ}, v8")
    e("v_lshrrev_b32 v9, 1, v6")
    e("s_lshl_b32 s27, s35, 2")
    for j in range(2):
        e(f"v_add_u32 v{15+j}, {2*j}, v9"); e(f"v_add_u32 v{15+j}, s27, v{15+j}")
        e(f"v_xor_b32 v{15+j}, v{15+j}, v7"); e(f"v_lshl_add_u32 v{15+j}, v{15+j}, 4, v8")
    for i in range(MB*16): e(f"v_mov_b32 v{ACC+i}, 0")
    e("s_mov_b32 s24, s31"); e("s_mov_b32 s25, 0"); e(f"s_mov_b32 s26, {nk}")
    def dma(st):
        for j in range(NA):
            e(f"s_add_u32 m0, s38, {st*ST+j*1024}"); e(f"s_add_u32 s27, s24, {j*8*lda}")
            e("buffer_load_dwordx4 v10, s[8:11], s27 offen lds")
        for s in range(2):
            for j in range(2):
                e(f"s_add_u32 m0, s39, {st*ST+s*8192+j*1024}"); e(f"s_add_u32 s27, s25, s{32+s}")
                e(f"buffer_load_dwordx4 v{11+j}, s[{12+4*s}:{15+4*s}], s27 offen lds")
        e("s_add_u32 s24, s24, 128"); e("s_add_u32 s25, s25, s40")
    def step(st):
        e("s_waitcnt vmcnt(0)"); e("s_barrier")
        e("s_cmp_lt_u32 s26, 2"); e(f"s_cbranch_scc1 {p}_nd{st}")
        dma(st^1); lab(f"{p}_nd{st}")
        for kk in range(2):
            b=FR+kk*32
            for mb in range(MB): e(f"ds_read_b128 v[{b+mb*4}:{b+mb*4+3}], v{13+kk} offset:{st*ST+mb*2048}")
            for nb in range(4):
                for hh in range(2):
                    r=b+16+nb*4+hh*2
                    e(f"ds_read_b64_tr_b16 v[{r}:{r+1}], v{15+(nb&1)} offset:{st*ST+(nb>>1)*8192+kk*4096+hh*512}")
        for kk in range(2):
            b=FR+kk*32
            e(f"s_waitcnt lgkmcnt({(MB+8) if kk==0 else 0})")
            for nb in range(4):
                for mb in range(MB):
                    a=ACC+(nb*MB+mb)*4
                    e(f"v_mfma_f32_16x16x32_bf16 v[{a}:{a+3}], v[{b+16+nb*4}:{b+19+nb*4}], v[{b+mb*4}:{b+mb*4+3}], v[{a}:{a+3}]")
        e("s_sub_u32 s26, s26, 1")
    dma(0)
    lab(f"{p}_loop"); step(0); e("s_cmp_eq_u32 s26, 0"); e(f"s_cbranch_scc1 {p}_done")
    step(1); e("s_cmp_lg_u32 s26, 0"); e(f"s_cbranch_scc1 {p}_loop")
    lab(f"{p}_done"); e("s_nop 15")
def rnd_pack(a,d):
    e(f"v_cvt_pk_bf16_f32 v{d}, v{a}, v{a+1}"); e(f"v_cvt_pk_bf16_f32 v{d+1}, v{a+2}, v{a+3}")
def unpack(d,a):
    e(f"v_lshlrev_b32 v{a}, 16, v{d}"); e(f"v_and_b32 v{a+1}, 0xffff0000, v{d}")
    e(f"v_lshlrev_b32 v{a+2}, 16, v{d+1}"); e(f"v_and_b32 v{a+3}, 0xffff0000, v{d+1}")
def head(k):
    L.append(f".globl {k}\n.p2align 8\n.type {k},@function\n{k}:")
    e("s_load_dwordx16 s[44:59], s[0:1], 0"); e("s_load_dwordx4 s[60:63], s[0:1], 64"); e("s_load_dwordx2 s[64:65], s[0:1], 80")
    e("s_waitcnt lgkmcnt(0)")

head("k1_kernel")
e("s_cmp_ge_u32 s2, 704"); e("s_cbranch_scc1 k1_end")
srd(20,64,65,WS)
e("s_cmp_ge_u32 s2, 672"); e("s_cbranch_scc1 k1_g")
srd(8,44,45,2621440)
e("s_and_b32 s41, s2, 15"); e("s_lshr_b32 s42, s2, 4")
e("s_mul_i32 s31, s41, 163840")
e("s_cmp_ge_u32 s42, 15"); e("s_cbranch_scc1 k1_ff")
srd(12,46,47,2457600); srd(16,46,47,2457600)
e("s_mov_b32 s30, 3840"); e("s_lshl_b32 s32, s42, 8"); e("s_add_u32 s33, s32, 128"); e("s_branch k1_go")
lab("k1_ff")
srd(12,52,53,2211840); srd(16,54,55,2211840)
e("s_mov_b32 s30, 3456"); e("s_sub_u32 s32, s42, 15"); e("s_lshl_b32 s32, s32, 7"); e("s_mov_b32 s33, s32")
lab("k1_go")
gemm_core("k1",4,10,1280)
e("s_lshl_b32 s27, s41, 7"); e("s_lshl_b32 s43, s34, 6"); e("s_add_u32 s27, s27, s43"); e("v_add_u32 v5, s27, v3")
e("s_cmp_ge_u32 s42, 15"); e("s_cbranch_scc1 k1_epf")
e("s_mul_i32 s27, s42, 13108"); e("s_lshr_b32 s27, s27, 16")
e("s_mul_i32 s43, s27, 5"); e("s_sub_u32 s43, s42, s43"); e("s_lshl_b32 s43, s43, 7")
e("s_mul_i32 s66, s27, 2621440"); e("s_lshl_b32 s27, s35, 5"); e("s_add_u32 s43, s43, s27")
e("v_mul_u32_u24 v5, 40, v5"); e("v_add_u32 v5, s66, v5")
e("s_movk_i32 s67, 3277")
for nb in range(4):
    e(f"v_lshlrev_b32 v6, 2, v4"); e(f"v_add_u32 v6, s43, v6"); e(f"v_add_u32 v6, {(nb>>1)*64+(nb&1)*16}, v6")
    e("v_mul_lo_u32 v7, v6, s67"); e("v_lshrrev_b32 v7, 16, v7")
    e("v_mul_u32_u24 v8, 20, v7"); e("v_sub_u32 v8, v6, v8")
    e("v_mul_u32_u24 v7, 81920, v7"); e("v_lshl_add_u32 v7, v8, 1, v7"); e("v_add_u32 v7, v7, v5")
    for mb in range(4):
        d=128+(nb*4+mb)*2
        rnd_pack(ACC+(nb*4+mb)*4,d)
        e(f"buffer_store_dwordx2 v[{d}:{d+1}], v7, s[20:23], 0 offen offset:{mb*640}")
e("s_branch k1_end")
lab("k1_epf")
e("s_movk_i32 s67, 3456"); e("v_mul_lo_u32 v5, v5, s67"); e("v_lshl_add_u32 v5, v4, 3, v5")
e("s_lshl_b32 s27, s35, 6"); e("s_add_u32 s27, s27, s32"); e(f"s_add_u32 s27, s27, {HO}"); e("v_add_u32 v5, s27, v5")
e("s_mov_b32 s67, 0xbfb8aa3b")
for j in range(2):
    for mb in range(4):
        g=ACC+(j*4+mb)*4; u=ACC+((j+2)*4+mb)*4; d=128+(j*4+mb)*2
        rnd_pack(g,20); rnd_pack(u,22); unpack(20,24); unpack(22,28)
        for r in range(4): e(f"v_mul_f32 v{32+r}, s67, v{24+r}")
        for r in range(4): e(f"v_exp_f32 v{32+r}, v{32+r}")
        for r in range(4): e(f"v_add_f32 v{32+r}, 1.0, v{32+r}")
        for r in range(4): e(f"v_rcp_f32 v{32+r}, v{32+r}")
        e("s_nop 0")
        for r in range(4): e(f"v_mul_f32 v{24+r}, v{24+r}, v{32+r}")
        rnd_pack(24,20); unpack(20,24)
        for r in range(4): e(f"v_mul_f32 v{24+r}, v{24+r}, v{28+r}")
        rnd_pack(24,d)
        e(f"s_mov_b32 s27, {mb*16*3456+j*32}")
        e(f"buffer_store_dwordx2 v[{d}:{d+1}], v5, s[20:23], s27 offen")
e("s_branch k1_end")
lab("k1_g")
srd(8,44,45,2621440); srd(12,58,59,1280)
e("s_sub_u32 s27, s2, 672"); e("s_lshl_b32 s27, s27, 6")
e("v_lshrrev_b32 v1, 2, v0"); e("v_add_u32 v1, s27, v1"); e("v_and_b32 v2, 3, v0")
e("v_mul_u32_u24 v3, 320, v2"); e("v_mul_u32_u24 v4, 1280, v1"); e("v_add_u32 v4, v4, v3"); e("v_mov_b32 v5, 0")
for i in range(20):
    e(f"buffer_load_dwordx4 v[8:11], v4, s[8:11], 0 offen offset:{i*16}")
    e(f"buffer_load_dwordx4 v[12:15], v3, s[12:15], 0 offen offset:{i*16}")
    e("s_waitcnt vmcnt(0)")
    for hf in range(2):
        unpack(8+2*hf,16); unpack(12+2*hf,20)
        for r in range(4): e(f"v_mul_f32 v{16+r}, v{16+r}, v{20+r}")
        rnd_pack(16,24); unpack(24,16)
        for r in range(4): e(f"v_add_f32 v5, v5, v{16+r}")
e("s_nop 1"); e("v_add_f32_dpp v6, v5, v5 quad_perm:[1,0,3,2] row_mask:0xf bank_mask:0xf")
e("s_nop 1"); e("v_add_f32_dpp v5, v6, v6 quad_perm:[2,3,0,1] row_mask:0xf bank_mask:0xf")
e("v_cvt_pk_bf16_f32 v5, v5, v5"); e("v_lshlrev_b32 v5, 16, v5")
e("v_mul_f32 v5, 0xbfb8aa3b, v5"); e("v_exp_f32 v5, v5"); e("s_nop 0"); e("v_add_f32 v5, 1.0, v5"); e("v_rcp_f32 v5, v5"); e("s_nop 0")
e("v_cvt_pk_bf16_f32 v5, v5, v5"); e("v_lshlrev_b32 v5, 16, v5")
e("v_lshlrev_b32 v1, 2, v1"); e(f"v_add_u32 v1, {GO}, v1")
e("buffer_store_dword v5, v1, s[20:23], 0 offen")
lab("k1_end"); e("s_endpgm")

NG2=160
head("k2_kernel")
e(f"s_cmp_ge_u32 s2, {NG2+1024}"); e("s_cbranch_scc1 k2_end")
srd(20,64,65,WS)
e(f"s_cmp_ge_u32 s2, {NG2}"); e("s_cbranch_scc1 k2_att")
srd(8,64,65,WS); srd(12,56,57,2211840); srd(16,56,57,2211840)
e("s_and_b32 s41, s2, 31"); e("s_lshr_b32 s42, s2, 5")
e("s_mul_i32 s31, s41, 221184"); e(f"s_add_u32 s31, s31, {HO}")
e("s_mov_b32 s30, 1280"); e("s_lshl_b32 s32, s42, 8"); e("s_add_u32 s33, s32, 128")
gemm_core("k2",2,27,3456)
def ep_addr(base):
    e("s_lshl_b32 s27, s41, 6"); e("s_lshl_b32 s43, s34, 5"); e("s_add_u32 s27, s27, s43"); e("v_add_u32 v6, s27, v3")
    e("v_mul_u32_u24 v5, 1280, v6"); e("v_lshl_add_u32 v5, v4, 3, v5")
    e("s_lshl_b32 s27, s35, 6"); e("s_add_u32 s27, s27, s32"); e("v_add_u32 v5, s27, v5")
    if base: e(f"v_add_u32 v5, {base}, v5")
ep_addr(BO)
for nb in range(4):
    for mb in range(2):
        d=128+(nb*2+mb)*2; rnd_pack(ACC+(nb*2+mb)*4,d)
        e(f"s_mov_b32 s27, {mb*16*1280+(nb>>1)*128+(nb&1)*32}")
        e(f"buffer_store_dwordx2 v[{d}:{d+1}], v5, s[20:23], s27 offen")
e("s_branch k2_end")
lab("k2_att")
e(f"s_sub_u32 s27, s2, {NG2}"); e("s_and_b32 s41, s27, 31"); e("s_lshr_b32 s42, s27, 5")
e("v_lshrrev_b32 v1, 6, v0"); e("v_and_b32 v2, 63, v0"); e("s_nop 0"); e("v_readfirstlane_b32 s36, v1")
e("s_lshl_b32 s43, s42, 11"); e("s_lshl_b32 s27, s41, 6"); e("s_add_u32 s43, s43, s27")
e("s_mul_i32 s24, s43, 40"); e(f"s_add_u32 s24, s24, {KO-256*40}")
e("v_lshlrev_b32 v3, 4, v2")
for t,off in ((0,0),(1,13312)):
    for j in range(4):
        if j==3: e("s_cmp_lg_u32 s36, 0"); e(f"s_cbranch_scc1 k2_sk{t}")
        e("s_lshl_b32 s27, s36, 10"); e(f"s_add_u32 s27, s27, {j*4096}")
        e(f"s_add_u32 m0, s27, {off}"); e("s_add_u32 s27, s27, s24"); e(f"s_add_u32 s27, s27, {t*2621440}")
        e("buffer_load_dwordx4 v3, s[20:23], s27 offen lds")
    lab(f"k2_sk{t}")
e("v_and_b32 v3, 15, v2"); e("v_lshrrev_b32 v4, 4, v2")
e("s_lshl_b32 s27, s36, 4"); e("s_add_u32 s43, s43, s27")
e("v_add_u32 v5, s43, v3"); e("v_mul_u32_u24 v5, 40, v5"); e("v_lshl_add_u32 v5, v4, 4, v5")
e("buffer_load_dwordx4 v[8:11], v5, s[20:23], 0 offen")
e("s_mul_i32 s27, s36, 640")
e("v_mul_u32_u24 v6, 40, v3"); e("v_lshl_add_u32 v6, v4, 4, v6"); e("v_add_u32 v6, s27, v6")
e("v_lshrrev_b32 v7, 2, v3"); e("v_lshl_add_u32 v7, v4, 2, v7"); e("v_mul_u32_u24 v7, 40, v7")
e("v_and_b32 v12, 3, v3"); e("v_lshl_add_u32 v7, v12, 3, v7"); e("v_add_u32 v7, s27, v7"); e("v_add_u32 v7, 13312, v7")
e("v_cmp_gt_u32 vcc, 3, v4"); e("v_cmp_gt_u32 s[28:29], 2, v4")
e("s_waitcnt vmcnt(0)"); e("s_barrier")
e("v_cndmask_b32 v8, 0, v8, vcc"); e("v_cndmask_b32 v9, 0, v9, vcc")
e("v_cndmask_b32 v10, 0, v10, s[28:29]"); e("v_cndmask_b32 v11, 0, v11, s[28:29]")
S=64
for t in range(17):
    e(f"ds_read_b64 v[{132+4*t}:{133+4*t}], v6 offset:{t*640}"); e(f"ds_read_b64 v[{134+4*t}:{135+4*t}], v6 offset:{t*640+8}")
for t in range(17):
    e(f"s_waitcnt lgkmcnt({min(15,2*(16-t))})")
    e(f"v_mfma_f32_16x16x32_bf16 v[{S+4*t}:{S+3+4*t}], v[{132+4*t}:{135+4*t}], v[8:11], 0")
e("v_lshlrev_b32 v12, 2, v4"); e("v_mov_b32 v13, 0xf149f2ca"); e("s_nop 7")
for r in range(4):
    e(f"v_add_u32 v14, {r}, v12"); e("v_cmp_gt_u32 vcc, v14, v3"); e("s_nop 1")
    e(f"v_cndmask_b32 v{S+r}, v13, v{S+r}, vcc"); e(f"v_cndmask_b32 v{S+64+r}, v{S+64+r}, v13, vcc")
e("s_lshl_b32 s27, s41, 2"); e("s_add_u32 s27, s27, s36")
e("s_cmp_ge_u32 s27, 16"); e("s_cbranch_scc1 k2_nm")
for t in range(16):
    e(f"s_add_u32 s26, s27, {t}"); e("s_cmp_lt_u32 s26, 16"); e("s_cselect_b64 s[28:29], -1, 0")
    for r in range(4): e(f"v_cndmask_b32 v{S+4*t+r}, v{S+4*t+r}, v13, s[28:29]")
lab("k2_nm")
e(f"v_max3_f32 v14, v{S}, v{S+1}, v{S+2}")
for i in range(3,67,2): e(f"v_max3_f32 v14, v14, v{S+i}, v{S+i+1}")
e(f"v_max_f32 v14, v14, v{S+67}")
e("v_xor_b32 v15, 16, v2"); e("v_lshlrev_b32 v15, 2, v15"); e("v_xor_b32 v16, 32, v2"); e("v_lshlrev_b32 v16, 2, v16")
for a in (15,16):
    e(f"ds_bpermute_b32 v17, v{a}, v14"); e("s_waitcnt lgkmcnt(0)"); e("v_max_f32 v14, v14, v17")
e("s_mov_b32 s27, 0x3ea52ba0"); e("v_mul_f32 v14, s27, v14"); e("v_mov_b32 v18, 0")
for i in range(68): e(f"v_fma_f32 v{S+i}, v{S+i}, s27, -v14")
for i in range(68): e(f"v_exp_f32 v{S+i}, v{S+i}")
e("s_nop 0")
for i in range(68): e(f"v_add_f32 v18, v18, v{S+i}")
for t in range(17): rnd_pack(S+4*t,132+2*t)
for a in (15,16):
    e(f"ds_bpermute_b32 v17, v{a}, v18"); e("s_waitcnt lgkmcnt(0)"); e("v_add_f32 v18, v18, v17")
e("v_rcp_f32 v18, v18")
for i in range(8): e(f"v_mov_b32 v{20+i}, 0")
for db in range(2):
    for t in range(17): e(f"ds_read_b64_tr_b16 v[{S+2*t}:{S+1+2*t}], v7 offset:{t*640+db*32}")
    e("s_waitcnt lgkmcnt(0)")
    o=20+4*db
    for t in range(0,16,2): e(f"v_mfma_f32_16x16x32_bf16 v[{o}:{o+3}], v[{S+2*t}:{S+3+2*t}], v[{132+2*t}:{135+2*t}], v[{o}:{o+3}]")
    e("s_nop 7"); e(f"v_mfma_f32_16x16x16_bf16 v[{o}:{o+3}], v[{S+32}:{S+33}], v[164:165], v[{o}:{o+3}]")
    e("s_nop 7")
e("s_nop 7")
for i in range(8): e(f"v_mul_f32 v{20+i}, v{20+i}, v18")
rnd_pack(20,28); rnd_pack(24,30)
e("s_and_b32 s27, s43, 2047"); e("v_add_u32 v5, s27, v3"); e("v_mul_u32_u24 v5, 1280, v5"); e("v_lshl_add_u32 v5, v4, 3, v5")
e("s_mul_i32 s27, s42, 40"); e(f"s_add_u32 s27, s27, {OO}")
e("buffer_store_dwordx2 v[28:29], v5, s[20:23], s27 offen")
e("v_cmp_eq_u32 vcc, 0, v4"); e("s_and_saveexec_b64 s[28:29], vcc")
e("buffer_store_dwordx2 v[30:31], v5, s[20:23], s27 offen offset:32")
lab("k2_end"); e("s_endpgm")

head("k3_kernel")
e("s_cmp_ge_u32 s2, 160"); e("s_cbranch_scc1 k3_end")
srd(20,64,65,WS); srd(68,60,61,2621440)
srd(8,64,65,WS); srd(12,48,49,819200); srd(16,48,49,819200)
e("s_and_b32 s41, s2, 31"); e("s_lshr_b32 s42, s2, 5")
e("s_mul_i32 s31, s41, 81920"); e(f"s_add_u32 s31, s31, {OO}")
e("s_mov_b32 s30, 1280"); e("s_lshl_b32 s32, s42, 8"); e("s_add_u32 s33, s32, 128")
gemm_core("k3",2,10,1280)
ep_addr(0)
e(f"v_lshlrev_b32 v6, 2, v6")
for mb in range(2): e(f"buffer_load_dword v{16+mb}, v6, s[20:23], 0 offen offset:{mb*64}" .replace(", 0 offen",f", s27 offen") if False else f"s_mov_b32 s27, {GO}") or e(f"buffer_load_dword v{16+mb}, v6, s[20:23], s27 offen offset:{mb*64}")
for nb in range(4):
    for mb in range(2):
        d=128+(nb*2+mb)*2
        e(f"s_mov_b32 s27, {BO+mb*16*1280+(nb>>1)*128+(nb&1)*32}")
        e(f"buffer_load_dwordx2 v[{d}:{d+1}], v5, s[20:23], s27 offen")
e("s_waitcnt vmcnt(0)")
for mb in range(2):
    e(f"v_sub_f32 v{18+mb}, 1.0, v{16+mb}"); e(f"v_cvt_pk_bf16_f32 v{18+mb}, v{18+mb}, v{18+mb}"); e(f"v_lshlrev_b32 v{18+mb}, 16, v{18+mb}")
for nb in range(4):
    for mb in range(2):
        d=128+(nb*2+mb)*2; a=ACC+(nb*2+mb)*4
        rnd_pack(a,20); unpack(20,24); unpack(d,28)
        for r in range(4): e(f"v_mul_f32 v{24+r}, v{24+r}, v{16+mb}"); e(f"v_mul_f32 v{28+r}, v{28+r}, v{18+mb}")
        rnd_pack(24,20); rnd_pack(28,22); unpack(20,24); unpack(22,28)
        for r in range(4): e(f"v_add_f32 v{24+r}, v{24+r}, v{28+r}")
        rnd_pack(24,d)
        e(f"s_mov_b32 s27, {mb*16*1280+(nb>>1)*128+(nb&1)*32}")
        e(f"buffer_store_dwordx2 v[{d}:{d+1}], v5, s[68:71], s27 offen")
lab("k3_end"); e("s_endpgm")

hdr=f"""; @launch kernel=k1_kernel grid=(704,1,1) block=(256,1,1) lds=65536
; @launch kernel=k2_kernel grid=({NG2+1024},1,1) block=(256,1,1) lds=49152
; @launch kernel=k3_kernel grid=(160,1,1) block=(256,1,1) lds=49152
.amdgcn_target "amdgcn-amd-amdhsa--gfx950"
.text
"""
kd='.section .rodata,"a"\n'
for k in ("k1_kernel","k2_kernel","k3_kernel"):
    kd+=f""".p2align 6
.amdhsa_kernel {k}
  .amdhsa_next_free_vgpr 200
  .amdhsa_next_free_sgpr 80
  .amdhsa_accum_offset 200
  .amdhsa_group_segment_fixed_size 0
  .amdhsa_kernarg_size 88
  .amdhsa_user_sgpr_count 2
  .amdhsa_user_sgpr_kernarg_segment_ptr 1
  .amdhsa_system_sgpr_workgroup_id_x 1
.end_amdhsa_kernel
"""
open(f"cdna_kernels/{NAME}.s","w").write(hdr+"\n".join(L)+"\n"+kd)
```

```python
NAME="gated_mix__sliding_block__swiglu_ffn__prompt"
L=[]
def e(s): L.append("    "+s)
def lab(s): L.append(s+":")
QO,KO,VO=0,2621440,5242880
HO=7864320; OO=14942208; BO=17563648; GO=20185088
WS=268435456

def srd(d,lo,hi,size):
    e(f"s_mov_b32 s{d}, s{lo}"); e(f"s_and_b32 s{d+1}, s{hi}, 0xffff")
    e(f"s_mov_b32 s{d+2}, {size}"); e(f"s_mov_b32 s{d+3}, 0x20000")

ACC=64; FR=128
def gemm_core(p, MB, nk, lda):
    BM=MB*32; ASZ=BM*128; ST=ASZ+16384; NA=BM//32
    e("v_lshrrev_b32 v1, 6, v0"); e("v_and_b32 v2, 63, v0"); e("s_nop 0")
    e("v_readfirstlane_b32 s36, v1")
    e("v_lshrrev_b32 v3, 3, v2"); e("v_and_b32 v4, 7, v2")
    e(f"s_mul_i32 s37, s36, {BM//4}")
    e("v_xor_b32 v5, v4, v3"); e("v_lshlrev_b32 v5, 4, v5")
    e("v_add_u32 v6, s37, v3"); e(f"s_mov_b32 s27, {lda}"); e("v_mul_lo_u32 v6, v6, s27"); e("v_add_u32 v10, v6, v5")
    e("s_lshl_b32 s27, s36, 4"); e("v_add_u32 v6, s27, v3")
    e("v_and_b32 v7, 2, v3"); e("v_xor_b32 v7, v7, v4")
    e("v_mul_lo_u32 v8, v6, s30"); e("v_lshl_add_u32 v11, v7, 4, v8")
    e("v_add_u32 v6, 8, v6"); e("v_xor_b32 v7, 4, v7")
    e("v_mul_lo_u32 v8, v6, s30"); e("v_lshl_add_u32 v12, v7, 4, v8")
    e(f"s_mul_i32 s38, s36, {BM//4*128}")
    e(f"s_lshl_b32 s39, s36, 11"); e(f"s_add_u32 s39, s39, {ASZ}")
    e("s_lshl_b32 s40, s30, 6")
    e("s_lshr_b32 s34, s36, 1"); e("s_and_b32 s35, s36, 1")
    e("v_and_b32 v3, 15, v2"); e("v_lshrrev_b32 v4, 4, v2")
    e(f"s_mul_i32 s27, s34, {MB*16*128}")
    e("v_and_b32 v5, 7, v3"); e("v_xor_b32 v5, v5, v4"); e("v_lshlrev_b32 v5, 4, v5")
    e("v_lshl_add_u32 v5, v3, 7, v5"); e("v_add_u32 v13, s27, v5"); e("v_xor_b32 v14, 64, v13")
    e("v_lshrrev_b32 v5, 2, v3"); e("v_and_b32 v6, 3, v3")
    e("v_and_b32 v7, 2, v5"); e("v_and_b32 v8, 1, v4"); e("v_lshl_add_u32 v7, v8, 2, v7")
    e("v_lshl_add_u32 v8, v4, 3, v5"); e("v_lshlrev_b32 v8, 7, v8")
    e("v_and_b32 v9, 1, v6"); e("v_lshl_add_u32 v8, v9, 3, v8")
    e(f"v_add_u32 v8, {ASZ}, v8")
    e("v_lshrrev_b32 v9, 1, v6")
    e("s_lshl_b32 s27, s35, 2")
    for j in range(2):
        e(f"v_add_u32 v{15+j}, {2*j}, v9"); e(f"v_add_u32 v{15+j}, s27, v{15+j}")
        e(f"v_xor_b32 v{15+j}, v{15+j}, v7"); e(f"v_lshl_add_u32 v{15+j}, v{15+j}, 4, v8")
    for i in range(MB*16): e(f"v_mov_b32 v{ACC+i}, 0")
    e("s_mov_b32 s24, s31"); e("s_mov_b32 s25, 0"); e(f"s_mov_b32 s26, {nk}")
    def dma(st):
        for j in range(NA):
            e(f"s_add_u32 m0, s38, {st*ST+j*1024}"); e(f"s_add_u32 s27, s24, {j*8*lda}")
            e("buffer_load_dwordx4 v10, s[8:11], s27 offen lds")
        for s in range(2):
            for j in range(2):
                e(f"s_add_u32 m0, s39, {st*ST+s*8192+j*1024}"); e(f"s_add_u32 s27, s25, s{32+s}")
                e(f"buffer_load_dwordx4 v{11+j}, s[{12+4*s}:{15+4*s}], s27 offen lds")
        e("s_add_u32 s24, s24, 128"); e("s_add_u32 s25, s25, s40")
    def step(st):
        e("s_waitcnt vmcnt(0)"); e("s_barrier")
        e("s_cmp_lt_u32 s26, 2"); e(f"s_cbranch_scc1 {p}_nd{st}")
        dma(st^1); lab(f"{p}_nd{st}")
        for kk in range(2):
            b=FR+kk*32
            for mb in range(MB): e(f"ds_read_b128 v[{b+mb*4}:{b+mb*4+3}], v{13+kk} offset:{st*ST+mb*2048}")
            for nb in range(4):
                for hh in range(2):
                    r=b+16+nb*4+hh*2
                    e(f"ds_read_b64_tr_b16 v[{r}:{r+1}], v{15+(nb&1)} offset:{st*ST+(nb>>1)*8192+kk*4096+hh*512}")
        for kk in range(2):
            b=FR+kk*32
            e(f"s_waitcnt lgkmcnt({(MB+8) if kk==0 else 0})")
            for nb in range(4):
                for mb in range(MB):
                    a=ACC+(nb*MB+mb)*4
                    e(f"v_mfma_f32_16x16x32_bf16 v[{a}:{a+3}], v[{b+16+nb*4}:{b+19+nb*4}], v[{b+mb*4}:{b+mb*4+3}], v[{a}:{a+3}]")
        e("s_sub_u32 s26, s26, 1")
    dma(0)
    lab(f"{p}_loop"); step(0); e("s_cmp_eq_u32 s26, 0"); e(f"s_cbranch_scc1 {p}_done")
    step(1); e("s_cmp_lg_u32 s26, 0"); e(f"s_cbranch_scc1 {p}_loop")
    lab(f"{p}_done"); e("s_nop 15")
def rnd_pack(a,d):
    e(f"v_cvt_pk_bf16_f32 v{d}, v{a}, v{a+1}"); e(f"v_cvt_pk_bf16_f32 v{d+1}, v{a+2}, v{a+3}")
def unpack(d,a):
    e(f"v_lshlrev_b32 v{a}, 16, v{d}"); e(f"v_and_b32 v{a+1}, 0xffff0000, v{d}")
    e(f"v_lshlrev_b32 v{a+2}, 16, v{d+1}"); e(f"v_and_b32 v{a+3}, 0xffff0000, v{d+1}")
def head(k):
    L.append(f".globl {k}\n.p2align 8\n.type {k},@function\n{k}:")
    e("s_load_dwordx16 s[44:59], s[0:1], 0"); e("s_load_dwordx4 s[60:63], s[0:1], 64"); e("s_load_dwordx2 s[64:65], s[0:1], 80")
    e("s_waitcnt lgkmcnt(0)")

head("k1_kernel")
e("s_cmp_ge_u32 s2, 704"); e("s_cbranch_scc1 k1_end")
srd(20,64,65,WS)
e("s_cmp_lt_u32 s2, 32"); e("s_cbranch_scc1 k1_g"); e("s_sub_u32 s2, s2, 32")
srd(8,44,45,2621440)
e("s_and_b32 s41, s2, 15"); e("s_lshr_b32 s42, s2, 4")
e("s_mul_i32 s31, s41, 163840")
e("s_cmp_ge_u32 s42, 15"); e("s_cbranch_scc1 k1_ff")
srd(12,46,47,2457600); srd(16,46,47,2457600)
e("s_mov_b32 s30, 3840"); e("s_lshl_b32 s32, s42, 8"); e("s_add_u32 s33, s32, 128"); e("s_branch k1_go")
lab("k1_ff")
srd(12,52,53,2211840); srd(16,54,55,2211840)
e("s_mov_b32 s30, 3456"); e("s_sub_u32 s32, s42, 15"); e("s_lshl_b32 s32, s32, 7"); e("s_mov_b32 s33, s32")
lab("k1_go")
gemm_core("k1",4,10,1280)
e("s_lshl_b32 s27, s41, 7"); e("s_lshl_b32 s43, s34, 6"); e("s_add_u32 s27, s27, s43"); e("v_add_u32 v5, s27, v3")
e("s_cmp_ge_u32 s42, 15"); e("s_cbranch_scc1 k1_epf")
e("s_mul_i32 s27, s42, 13108"); e("s_lshr_b32 s27, s27, 16")
e("s_mul_i32 s43, s27, 5"); e("s_sub_u32 s43, s42, s43"); e("s_lshl_b32 s43, s43, 7")
e("s_mul_i32 s66, s27, 2621440"); e("s_lshl_b32 s27, s35, 5"); e("s_add_u32 s43, s43, s27")
e("v_mul_u32_u24 v5, 40, v5"); e("v_add_u32 v5, s66, v5")
e("s_movk_i32 s67, 3277")
for nb in range(4):
    e(f"v_lshlrev_b32 v6, 2, v4"); e(f"v_add_u32 v6, s43, v6"); e(f"v_add_u32 v6, {(nb>>1)*64+(nb&1)*16}, v6")
    e("v_mul_lo_u32 v7, v6, s67"); e("v_lshrrev_b32 v7, 16, v7")
    e("v_mul_u32_u24 v8, 20, v7"); e("v_sub_u32 v8, v6, v8")
    e("v_mul_u32_u24 v7, 81920, v7"); e("v_lshl_add_u32 v7, v8, 1, v7"); e("v_add_u32 v7, v7, v5")
    for mb in range(4):
        d=128+(nb*4+mb)*2
        rnd_pack(ACC+(nb*4+mb)*4,d)
        e(f"buffer_store_dwordx2 v[{d}:{d+1}], v7, s[20:23], 0 offen offset:{mb*640}")
e("s_branch k1_end")
lab("k1_epf")
e("s_movk_i32 s67, 3456"); e("v_mul_lo_u32 v5, v5, s67"); e("v_lshl_add_u32 v5, v4, 3, v5")
e("s_lshl_b32 s27, s35, 6"); e("s_add_u32 s27, s27, s32"); e(f"s_add_u32 s27, s27, {HO}"); e("v_add_u32 v5, s27, v5")
e("s_mov_b32 s67, 0xbfb8aa3b")
for j in range(2):
    for mb in range(4):
        g=ACC+(j*4+mb)*4; u=ACC+((j+2)*4+mb)*4; d=128+(j*4+mb)*2
        rnd_pack(g,20); rnd_pack(u,22); unpack(20,24); unpack(22,28)
        for r in range(4): e(f"v_mul_f32 v{32+r}, s67, v{24+r}")
        for r in range(4): e(f"v_exp_f32 v{32+r}, v{32+r}")
        for r in range(4): e(f"v_add_f32 v{32+r}, 1.0, v{32+r}")
        for r in range(4): e(f"v_rcp_f32 v{32+r}, v{32+r}")
        e("s_nop 0")
        for r in range(4): e(f"v_mul_f32 v{24+r}, v{24+r}, v{32+r}")
        rnd_pack(24,20); unpack(20,24)
        for r in range(4): e(f"v_mul_f32 v{24+r}, v{24+r}, v{28+r}")
        rnd_pack(24,d)
        e(f"s_mov_b32 s27, {mb*16*3456+j*32}")
        e(f"buffer_store_dwordx2 v[{d}:{d+1}], v5, s[20:23], s27 offen")
e("s_branch k1_end")
lab("k1_g")
srd(8,44,45,2621440); srd(12,58,59,1280)
e("s_lshl_b32 s27, s2, 6")
e("v_lshrrev_b32 v1, 2, v0"); e("v_add_u32 v1, s27, v1"); e("v_and_b32 v2, 3, v0")
e("v_mul_u32_u24 v3, 320, v2"); e("v_mul_u32_u24 v4, 1280, v1"); e("v_add_u32 v4, v4, v3"); e("v_mov_b32 v5, 0")
for i in range(20):
    e(f"buffer_load_dwordx4 v[{32+8*i}:{35+8*i}], v4, s[8:11], 0 offen offset:{i*16}")
    e(f"buffer_load_dwordx4 v[{36+8*i}:{39+8*i}], v3, s[12:15], 0 offen offset:{i*16}")
for i in range(20):
    e(f"s_waitcnt vmcnt({38-2*i})")
    for hf in range(2):
        unpack(32+8*i+2*hf,16); unpack(36+8*i+2*hf,20)
        for r in range(4): e(f"v_mul_f32 v{16+r}, v{16+r}, v{20+r}")
        rnd_pack(16,24); unpack(24,16)
        for r in range(4): e(f"v_add_f32 v5, v5, v{16+r}")
e("s_nop 1"); e("v_add_f32_dpp v6, v5, v5 quad_perm:[1,0,3,2] row_mask:0xf bank_mask:0xf")
e("s_nop 1"); e("v_add_f32_dpp v5, v6, v6 quad_perm:[2,3,0,1] row_mask:0xf bank_mask:0xf")
e("v_cvt_pk_bf16_f32 v5, v5, v5"); e("v_lshlrev_b32 v5, 16, v5")
e("v_mul_f32 v5, 0xbfb8aa3b, v5"); e("v_exp_f32 v5, v5"); e("s_nop 0"); e("v_add_f32 v5, 1.0, v5"); e("v_rcp_f32 v5, v5"); e("s_nop 0")
e("v_cvt_pk_bf16_f32 v5, v5, v5"); e("v_lshlrev_b32 v5, 16, v5")
e("v_lshlrev_b32 v1, 2, v1"); e(f"v_add_u32 v1, {GO}, v1")
e("buffer_store_dword v5, v1, s[20:23], 0 offen")
lab("k1_end"); e("s_endpgm")

NG2=160
head("k2_kernel")
e(f"s_cmp_ge_u32 s2, {NG2+1024}"); e("s_cbranch_scc1 k2_end")
srd(20,64,65,WS)
e(f"s_cmp_ge_u32 s2, {NG2}"); e("s_cbranch_scc1 k2_att")
srd(8,64,65,WS); srd(12,56,57,2211840); srd(16,56,57,2211840)
e("s_and_b32 s41, s2, 31"); e("s_lshr_b32 s42, s2, 5")
e("s_mul_i32 s31, s41, 221184"); e(f"s_add_u32 s31, s31, {HO}")
e("s_mov_b32 s30, 1280"); e("s_lshl_b32 s32, s42, 8"); e("s_add_u32 s33, s32, 128")
gemm_core("k2",2,27,3456)
def ep_addr(base):
    e("s_lshl_b32 s27, s41, 6"); e("s_lshl_b32 s43, s34, 5"); e("s_add_u32 s27, s27, s43"); e("v_add_u32 v6, s27, v3")
    e("v_mul_u32_u24 v5, 1280, v6"); e("v_lshl_add_u32 v5, v4, 3, v5")
    e("s_lshl_b32 s27, s35, 6"); e("s_add_u32 s27, s27, s32"); e("v_add_u32 v5, s27, v5")
    if base: e(f"v_add_u32 v5, {base}, v5")
ep_addr(BO)
for nb in range(4):
    for mb in range(2):
        d=128+(nb*2+mb)*2; rnd_pack(ACC+(nb*2+mb)*4,d)
        e(f"s_mov_b32 s27, {mb*16*1280+(nb>>1)*128+(nb&1)*32}")
        e(f"buffer_store_dwordx2 v[{d}:{d+1}], v5, s[20:23], s27 offen")
e("s_branch k2_end")
lab("k2_att")
e(f"s_sub_u32 s27, s2, {NG2}"); e("s_and_b32 s41, s27, 31"); e("s_lshr_b32 s42, s27, 5")
e("v_lshrrev_b32 v1, 6, v0"); e("v_and_b32 v2, 63, v0"); e("s_nop 0"); e("v_readfirstlane_b32 s36, v1")
e("s_lshl_b32 s43, s42, 11"); e("s_lshl_b32 s27, s41, 6"); e("s_add_u32 s43, s43, s27")
e("s_mul_i32 s24, s43, 40"); e(f"s_add_u32 s24, s24, {KO-256*40}")
e("v_lshlrev_b32 v3, 4, v2")
for t,off in ((0,0),(1,13312)):
    for j in range(4):
        if j==3: e("s_cmp_lg_u32 s36, 0"); e(f"s_cbranch_scc1 k2_sk{t}")
        e("s_lshl_b32 s27, s36, 10"); e(f"s_add_u32 s27, s27, {j*4096}")
        e(f"s_add_u32 m0, s27, {off}"); e("s_add_u32 s27, s27, s24"); e(f"s_add_u32 s27, s27, {t*2621440}")
        e("buffer_load_dwordx4 v3, s[20:23], s27 offen lds")
    lab(f"k2_sk{t}")
e("v_and_b32 v3, 15, v2"); e("v_lshrrev_b32 v4, 4, v2")
e("s_lshl_b32 s27, s36, 4"); e("s_add_u32 s43, s43, s27")
e("v_add_u32 v5, s43, v3"); e("v_mul_u32_u24 v5, 40, v5"); e("v_lshl_add_u32 v5, v4, 4, v5")
e("buffer_load_dwordx4 v[8:11], v5, s[20:23], 0 offen")
e("s_mul_i32 s27, s36, 640")
e("v_mul_u32_u24 v6, 40, v3"); e("v_lshl_add_u32 v6, v4, 4, v6"); e("v_add_u32 v6, s27, v6")
e("v_lshrrev_b32 v7, 2, v3"); e("v_lshl_add_u32 v7, v4, 2, v7"); e("v_mul_u32_u24 v7, 40, v7")
e("v_and_b32 v12, 3, v3"); e("v_lshl_add_u32 v7, v12, 3, v7"); e("v_add_u32 v7, s27, v7"); e("v_add_u32 v7, 13312, v7")
e("v_cmp_gt_u32 vcc, 3, v4"); e("v_cmp_gt_u32 s[28:29], 2, v4")
e("s_waitcnt vmcnt(0)"); e("s_barrier")
e("v_cndmask_b32 v8, 0, v8, vcc"); e("v_cndmask_b32 v9, 0, v9, vcc")
e("v_cndmask_b32 v10, 0, v10, s[28:29]"); e("v_cndmask_b32 v11, 0, v11, s[28:29]")
S=64
for t in range(17):
    e(f"ds_read_b64 v[{132+4*t}:{133+4*t}], v6 offset:{t*640}"); e(f"ds_read_b64 v[{134+4*t}:{135+4*t}], v6 offset:{t*640+8}")
for t in range(17):
    e(f"s_waitcnt lgkmcnt({min(15,2*(16-t))})")
    e(f"v_mfma_f32_16x16x32_bf16 v[{S+4*t}:{S+3+4*t}], v[{132+4*t}:{135+4*t}], v[8:11], 0")
e("v_lshlrev_b32 v12, 2, v4"); e("v_mov_b32 v13, 0xf149f2ca"); e("s_nop 7")
for r in range(4):
    e(f"v_add_u32 v14, {r}, v12"); e("v_cmp_gt_u32 vcc, v14, v3"); e("s_nop 1")
    e(f"v_cndmask_b32 v{S+r}, v13, v{S+r}, vcc"); e(f"v_cndmask_b32 v{S+64+r}, v{S+64+r}, v13, vcc")
e("s_lshl_b32 s27, s41, 2"); e("s_add_u32 s27, s27, s36")
e("s_cmp_ge_u32 s27, 16"); e("s_cbranch_scc1 k2_nm")
for t in range(16):
    e(f"s_add_u32 s26, s27, {t}"); e("s_cmp_lt_u32 s26, 16"); e("s_cselect_b64 s[28:29], -1, 0")
    for r in range(4): e(f"v_cndmask_b32 v{S+4*t+r}, v{S+4*t+r}, v13, s[28:29]")
lab("k2_nm")
e(f"v_max3_f32 v14, v{S}, v{S+1}, v{S+2}")
for i in range(3,67,2): e(f"v_max3_f32 v14, v14, v{S+i}, v{S+i+1}")
e(f"v_max_f32 v14, v14, v{S+67}")
e("v_xor_b32 v15, 16, v2"); e("v_lshlrev_b32 v15, 2, v15"); e("v_xor_b32 v16, 32, v2"); e("v_lshlrev_b32 v16, 2, v16")
for a in (15,16):
    e(f"ds_bpermute_b32 v17, v{a}, v14"); e("s_waitcnt lgkmcnt(0)"); e("v_max_f32 v14, v14, v17")
e("s_mov_b32 s27, 0x3ea52ba0"); e("v_mul_f32 v14, s27, v14"); e("v_mov_b32 v18, 0")
for i in range(68): e(f"v_fma_f32 v{S+i}, v{S+i}, s27, -v14")
for i in range(68): e(f"v_exp_f32 v{S+i}, v{S+i}")
e("s_nop 0")
for i in range(68): e(f"v_add_f32 v18, v18, v{S+i}")
for t in range(17): rnd_pack(S+4*t,132+2*t)
for a in (15,16):
    e(f"ds_bpermute_b32 v17, v{a}, v18"); e("s_waitcnt lgkmcnt(0)"); e("v_add_f32 v18, v18, v17")
e("v_rcp_f32 v18, v18")
for i in range(8): e(f"v_mov_b32 v{20+i}, 0")
for db in range(2):
    for t in range(17): e(f"ds_read_b64_tr_b16 v[{S+2*t}:{S+1+2*t}], v7 offset:{t*640+db*32}")
    e("s_waitcnt lgkmcnt(0)")
    o=20+4*db
    for t in range(0,16,2): e(f"v_mfma_f32_16x16x32_bf16 v[{o}:{o+3}], v[{S+2*t}:{S+3+2*t}], v[{132+2*t}:{135+2*t}], v[{o}:{o+3}]")
    e("s_nop 7"); e(f"v_mfma_f32_16x16x16_bf16 v[{o}:{o+3}], v[{S+32}:{S+33}], v[164:165], v[{o}:{o+3}]")
    e("s_nop 7")
e("s_nop 7")
for i in range(8): e(f"v_mul_f32 v{20+i}, v{20+i}, v18")
rnd_pack(20,28); rnd_pack(24,30)
e("s_and_b32 s27, s43, 2047"); e("v_add_u32 v5, s27, v3"); e("v_mul_u32_u24 v5, 1280, v5"); e("v_lshl_add_u32 v5, v4, 3, v5")
e("s_mul_i32 s27, s42, 40"); e(f"s_add_u32 s27, s27, {OO}")
e("buffer_store_dwordx2 v[28:29], v5, s[20:23], s27 offen")
e("v_cmp_eq_u32 vcc, 0, v4"); e("s_and_saveexec_b64 s[28:29], vcc")
e("buffer_store_dwordx2 v[30:31], v5, s[20:23], s27 offen offset:32")
lab("k2_end"); e("s_endpgm")

head("k3_kernel")
e("s_cmp_ge_u32 s2, 160"); e("s_cbranch_scc1 k3_end")
srd(20,64,65,WS); srd(68,60,61,2621440)
srd(8,64,65,WS); srd(12,48,49,819200); srd(16,48,49,819200)
e("s_and_b32 s41, s2, 31"); e("s_lshr_b32 s42, s2, 5")
e("s_mul_i32 s31, s41, 81920"); e(f"s_add_u32 s31, s31, {OO}")
e("s_mov_b32 s30, 1280"); e("s_lshl_b32 s32, s42, 8"); e("s_add_u32 s33, s32, 128")
gemm_core("k3",2,10,1280)
ep_addr(0)
e(f"v_lshlrev_b32 v6, 2, v6")
for mb in range(2): e(f"buffer_load_dword v{16+mb}, v6, s[20:23], 0 offen offset:{mb*64}" .replace(", 0 offen",f", s27 offen") if False else f"s_mov_b32 s27, {GO}") or e(f"buffer_load_dword v{16+mb}, v6, s[20:23], s27 offen offset:{mb*64}")
for nb in range(4):
    for mb in range(2):
        d=128+(nb*2+mb)*2
        e(f"s_mov_b32 s27, {BO+mb*16*1280+(nb>>1)*128+(nb&1)*32}")
        e(f"buffer_load_dwordx2 v[{d}:{d+1}], v5, s[20:23], s27 offen")
e("s_waitcnt vmcnt(0)")
for mb in range(2):
    e(f"v_sub_f32 v{18+mb}, 1.0, v{16+mb}"); e(f"v_cvt_pk_bf16_f32 v{18+mb}, v{18+mb}, v{18+mb}"); e(f"v_lshlrev_b32 v{18+mb}, 16, v{18+mb}")
for nb in range(4):
    for mb in range(2):
        d=128+(nb*2+mb)*2; a=ACC+(nb*2+mb)*4
        rnd_pack(a,20); unpack(20,24); unpack(d,28)
        for r in range(4): e(f"v_mul_f32 v{24+r}, v{24+r}, v{16+mb}"); e(f"v_mul_f32 v{28+r}, v{28+r}, v{18+mb}")
        rnd_pack(24,20); rnd_pack(28,22); unpack(20,24); unpack(22,28)
        for r in range(4): e(f"v_add_f32 v{24+r}, v{24+r}, v{28+r}")
        rnd_pack(24,d)
        e(f"s_mov_b32 s27, {mb*16*1280+(nb>>1)*128+(nb&1)*32}")
        e(f"buffer_store_dwordx2 v[{d}:{d+1}], v5, s[68:71], s27 offen")
lab("k3_end"); e("s_endpgm")

hdr=f"""; @launch kernel=k1_kernel grid=(704,1,1) block=(256,1,1) lds=65536
; @launch kernel=k2_kernel grid=({NG2+1024},1,1) block=(256,1,1) lds=49152
; @launch kernel=k3_kernel grid=(160,1,1) block=(256,1,1) lds=49152
.amdgcn_target "amdgcn-amd-amdhsa--gfx950"
.text
"""
kd='.section .rodata,"a"\n'
for k in ("k1_kernel","k2_kernel","k3_kernel"):
    kd+=f""".p2align 6
.amdhsa_kernel {k}
  .amdhsa_next_free_vgpr 200
  .amdhsa_next_free_sgpr 80
  .amdhsa_accum_offset 200
  .amdhsa_group_segment_fixed_size 0
  .amdhsa_kernarg_size 88
  .amdhsa_user_sgpr_count 2
  .amdhsa_user_sgpr_kernarg_segment_ptr 1
  .amdhsa_system_sgpr_workgroup_id_x 1
.end_amdhsa_kernel
"""
open(f"cdna_kernels/{NAME}.s","w").write(hdr+"\n".join(L)+"\n"+kd)
```

```python
NAME="gated_mix__sliding_block__swiglu_ffn__prompt"
L=[]
def e(s): L.append("    "+s)
def lab(s): L.append(s+":")
QO,KO,VO=0,2621440,5242880
HO=7864320; OO=14942208; BO=17563648; GO=20185088
WS=268435456

def srd(d,lo,hi,size):
    e(f"s_mov_b32 s{d}, s{lo}"); e(f"s_and_b32 s{d+1}, s{hi}, 0xffff")
    e(f"s_mov_b32 s{d+2}, {size}"); e(f"s_mov_b32 s{d+3}, 0x20000")

ACC=64; FR=128
def gemm_core(p, MB, nk, lda, NS):
    BM=MB*32; ASZ=BM*128; ST=ASZ+16384; NA=BM//32
    e("v_lshrrev_b32 v1, 6, v0"); e("v_and_b32 v2, 63, v0"); e("s_nop 0")
    e("v_readfirstlane_b32 s36, v1")
    e("v_lshrrev_b32 v3, 3, v2"); e("v_and_b32 v4, 7, v2")
    e(f"s_mul_i32 s37, s36, {BM//4}")
    e("v_xor_b32 v5, v4, v3"); e("v_lshlrev_b32 v5, 4, v5")
    e("v_add_u32 v6, s37, v3"); e(f"s_mov_b32 s27, {lda}"); e("v_mul_lo_u32 v6, v6, s27"); e("v_add_u32 v10, v6, v5")
    e("s_lshl_b32 s27, s36, 4"); e("v_add_u32 v6, s27, v3")
    e("v_and_b32 v7, 2, v3"); e("v_xor_b32 v7, v7, v4")
    e("v_mul_lo_u32 v8, v6, s30"); e("v_lshl_add_u32 v11, v7, 4, v8")
    e("v_add_u32 v6, 8, v6"); e("v_xor_b32 v7, 4, v7")
    e("v_mul_lo_u32 v8, v6, s30"); e("v_lshl_add_u32 v12, v7, 4, v8")
    e(f"s_mul_i32 s38, s36, {BM//4*128}")
    e(f"s_lshl_b32 s39, s36, 11"); e(f"s_add_u32 s39, s39, {ASZ}")
    e("s_lshl_b32 s40, s30, 6")
    e("s_lshr_b32 s34, s36, 1"); e("s_and_b32 s35, s36, 1")
    e("v_and_b32 v3, 15, v2"); e("v_lshrrev_b32 v4, 4, v2")
    e(f"s_mul_i32 s27, s34, {MB*16*128}")
    e("v_and_b32 v5, 7, v3"); e("v_xor_b32 v5, v5, v4"); e("v_lshlrev_b32 v5, 4, v5")
    e("v_lshl_add_u32 v5, v3, 7, v5"); e("v_add_u32 v13, s27, v5"); e("v_xor_b32 v14, 64, v13")
    e("v_lshrrev_b32 v5, 2, v3"); e("v_and_b32 v6, 3, v3")
    e("v_and_b32 v7, 2, v5"); e("v_and_b32 v8, 1, v4"); e("v_lshl_add_u32 v7, v8, 2, v7")
    e("v_lshl_add_u32 v8, v4, 3, v5"); e("v_lshlrev_b32 v8, 7, v8")
    e("v_and_b32 v9, 1, v6"); e("v_lshl_add_u32 v8, v9, 3, v8")
    e(f"v_add_u32 v8, {ASZ}, v8")
    e("v_lshrrev_b32 v9, 1, v6")
    e("s_lshl_b32 s27, s35, 2")
    for j in range(2):
        e(f"v_add_u32 v{15+j}, {2*j}, v9"); e(f"v_add_u32 v{15+j}, s27, v{15+j}")
        e(f"v_xor_b32 v{15+j}, v{15+j}, v7"); e(f"v_lshl_add_u32 v{15+j}, v{15+j}, 4, v8")
    for i in range(MB*16): e(f"v_mov_b32 v{ACC+i}, 0")
    e("s_mov_b32 s24, s31"); e("s_mov_b32 s25, 0"); e(f"s_mov_b32 s26, {nk}")
    def dma(st):
        for j in range(NA):
            e(f"s_add_u32 m0, s38, {st*ST+j*1024}"); e(f"s_add_u32 s27, s24, {j*8*lda}")
            e("buffer_load_dwordx4 v10, s[8:11], s27 offen lds")
        for s in range(2):
            for j in range(2):
                e(f"s_add_u32 m0, s39, {st*ST+s*8192+j*1024}"); e(f"s_add_u32 s27, s25, s{32+s}")
                e(f"buffer_load_dwordx4 v{11+j}, s[{12+4*s}:{15+4*s}], s27 offen lds")
        e("s_add_u32 s24, s24, 128"); e("s_add_u32 s25, s25, s40")
    def step(st):
        e(f"s_waitcnt vmcnt({(NA+4)*(NS-2)})"); e("s_barrier")
        dma((st+NS-1)%NS)
        for kk in range(2):
            b=FR+kk*32
            for mb in range(MB): e(f"ds_read_b128 v[{b+mb*4}:{b+mb*4+3}], v{13+kk} offset:{st*ST+mb*2048}")
            for nb in range(4):
                for hh in range(2):
                    r=b+16+nb*4+hh*2
                    e(f"ds_read_b64_tr_b16 v[{r}:{r+1}], v{15+(nb&1)} offset:{st*ST+(nb>>1)*8192+kk*4096+hh*512}")
        for kk in range(2):
            b=FR+kk*32
            e(f"s_waitcnt lgkmcnt({(MB+8) if kk==0 else 0})")
            for nb in range(4):
                for mb in range(MB):
                    a=ACC+(nb*MB+mb)*4
                    e(f"v_mfma_f32_16x16x32_bf16 v[{a}:{a+3}], v[{b+16+nb*4}:{b+19+nb*4}], v[{b+mb*4}:{b+mb*4+3}], v[{a}:{a+3}]")
        e("s_sub_u32 s26, s26, 1")
    for st in range(NS-1): dma(st)
    lab(f"{p}_loop")
    for st in range(NS):
        step(st); e("s_cmp_eq_u32 s26, 0"); e(f"s_cbranch_scc1 {p}_done")
    e(f"s_branch {p}_loop")
    lab(f"{p}_done"); e("s_nop 15")
def rnd_pack(a,d):
    e(f"v_cvt_pk_bf16_f32 v{d}, v{a}, v{a+1}"); e(f"v_cvt_pk_bf16_f32 v{d+1}, v{a+2}, v{a+3}")
def unpack(d,a):
    e(f"v_lshlrev_b32 v{a}, 16, v{d}"); e(f"v_and_b32 v{a+1}, 0xffff0000, v{d}")
    e(f"v_lshlrev_b32 v{a+2}, 16, v{d+1}"); e(f"v_and_b32 v{a+3}, 0xffff0000, v{d+1}")
def head(k):
    L.append(f".globl {k}\n.p2align 8\n.type {k},@function\n{k}:")
    e("s_load_dwordx16 s[44:59], s[0:1], 0"); e("s_load_dwordx4 s[60:63], s[0:1], 64"); e("s_load_dwordx2 s[64:65], s[0:1], 80")
    e("s_waitcnt lgkmcnt(0)")

head("k1_kernel")
e("s_cmp_ge_u32 s2, 704"); e("s_cbranch_scc1 k1_end")
srd(20,64,65,WS)
e("s_cmp_lt_u32 s2, 32"); e("s_cbranch_scc1 k1_g"); e("s_sub_u32 s2, s2, 32")
srd(8,44,45,2621440)
e("s_and_b32 s41, s2, 15"); e("s_lshr_b32 s42, s2, 4")
e("s_mul_i32 s31, s41, 163840")
e("s_cmp_ge_u32 s42, 15"); e("s_cbranch_scc1 k1_ff")
srd(12,46,47,2457600); srd(16,46,47,2457600)
e("s_mov_b32 s30, 3840"); e("s_lshl_b32 s32, s42, 8"); e("s_add_u32 s33, s32, 128"); e("s_branch k1_go")
lab("k1_ff")
srd(12,52,53,2211840); srd(16,54,55,2211840)
e("s_mov_b32 s30, 3456"); e("s_sub_u32 s32, s42, 15"); e("s_lshl_b32 s32, s32, 7"); e("s_mov_b32 s33, s32")
lab("k1_go")
gemm_core("k1",4,10,1280,2)
e("s_lshl_b32 s27, s41, 7"); e("s_lshl_b32 s43, s34, 6"); e("s_add_u32 s27, s27, s43"); e("v_add_u32 v5, s27, v3")
e("s_cmp_ge_u32 s42, 15"); e("s_cbranch_scc1 k1_epf")
e("s_mul_i32 s27, s42, 13108"); e("s_lshr_b32 s27, s27, 16")
e("s_mul_i32 s43, s27, 5"); e("s_sub_u32 s43, s42, s43"); e("s_lshl_b32 s43, s43, 7")
e("s_mul_i32 s66, s27, 2621440"); e("s_lshl_b32 s27, s35, 5"); e("s_add_u32 s43, s43, s27")
e("v_mul_u32_u24 v5, 40, v5"); e("v_add_u32 v5, s66, v5")
e("s_movk_i32 s67, 3277")
for nb in range(4):
    e(f"v_lshlrev_b32 v6, 2, v4"); e(f"v_add_u32 v6, s43, v6"); e(f"v_add_u32 v6, {(nb>>1)*64+(nb&1)*16}, v6")
    e("v_mul_lo_u32 v7, v6, s67"); e("v_lshrrev_b32 v7, 16, v7")
    e("v_mul_u32_u24 v8, 20, v7"); e("v_sub_u32 v8, v6, v8")
    e("v_mul_u32_u24 v7, 81920, v7"); e("v_lshl_add_u32 v7, v8, 1, v7"); e("v_add_u32 v7, v7, v5")
    for mb in range(4):
        d=128+(nb*4+mb)*2
        rnd_pack(ACC+(nb*4+mb)*4,d)
        e(f"buffer_store_dwordx2 v[{d}:{d+1}], v7, s[20:23], 0 offen offset:{mb*640}")
e("s_branch k1_end")
lab("k1_epf")
e("s_movk_i32 s67, 3456"); e("v_mul_lo_u32 v5, v5, s67"); e("v_lshl_add_u32 v5, v4, 3, v5")
e("s_lshl_b32 s27, s35, 6"); e("s_add_u32 s27, s27, s32"); e(f"s_add_u32 s27, s27, {HO}"); e("v_add_u32 v5, s27, v5")
e("s_mov_b32 s67, 0xbfb8aa3b")
for j in range(2):
    for mb in range(4):
        g=ACC+(j*4+mb)*4; u=ACC+((j+2)*4+mb)*4; d=128+(j*4+mb)*2
        rnd_pack(g,20); rnd_pack(u,22); unpack(20,24); unpack(22,28)
        for r in range(4): e(f"v_mul_f32 v{32+r}, s67, v{24+r}")
        for r in range(4): e(f"v_exp_f32 v{32+r}, v{32+r}")
        for r in range(4): e(f"v_add_f32 v{32+r}, 1.0, v{32+r}")
        for r in range(4): e(f"v_rcp_f32 v{32+r}, v{32+r}")
        e("s_nop 0")
        for r in range(4): e(f"v_mul_f32 v{24+r}, v{24+r}, v{32+r}")
        rnd_pack(24,20); unpack(20,24)
        for r in range(4): e(f"v_mul_f32 v{24+r}, v{24+r}, v{28+r}")
        rnd_pack(24,d)
        e(f"s_mov_b32 s27, {mb*16*3456+j*32}")
        e(f"buffer_store_dwordx2 v[{d}:{d+1}], v5, s[20:23], s27 offen")
e("s_branch k1_end")
lab("k1_g")
srd(8,44,45,2621440); srd(12,58,59,1280)
e("s_lshl_b32 s27, s2, 6")
e("v_lshrrev_b32 v1, 2, v0"); e("v_add_u32 v1, s27, v1"); e("v_and_b32 v2, 3, v0")
e("v_mul_u32_u24 v3, 320, v2"); e("v_mul_u32_u24 v4, 1280, v1"); e("v_add_u32 v4, v4, v3"); e("v_mov_b32 v5, 0")
for i in range(20):
    e(f"buffer_load_dwordx4 v[{32+8*i}:{35+8*i}], v4, s[8:11], 0 offen offset:{i*16}")
    e(f"buffer_load_dwordx4 v[{36+8*i}:{39+8*i}], v3, s[12:15], 0 offen offset:{i*16}")
for i in range(20):
    e(f"s_waitcnt vmcnt({38-2*i})")
    for hf in range(2):
        unpack(32+8*i+2*hf,16); unpack(36+8*i+2*hf,20)
        for r in range(4): e(f"v_mul_f32 v{16+r}, v{16+r}, v{20+r}")
        rnd_pack(16,24); unpack(24,16)
        for r in range(4): e(f"v_add_f32 v5, v5, v{16+r}")
e("s_nop 1"); e("v_add_f32_dpp v6, v5, v5 quad_perm:[1,0,3,2] row_mask:0xf bank_mask:0xf")
e("s_nop 1"); e("v_add_f32_dpp v5, v6, v6 quad_perm:[2,3,0,1] row_mask:0xf bank_mask:0xf")
e("v_cvt_pk_bf16_f32 v5, v5, v5"); e("v_lshlrev_b32 v5, 16, v5")
e("v_mul_f32 v5, 0xbfb8aa3b, v5"); e("v_exp_f32 v5, v5"); e("s_nop 0"); e("v_add_f32 v5, 1.0, v5"); e("v_rcp_f32 v5, v5"); e("s_nop 0")
e("v_cvt_pk_bf16_f32 v5, v5, v5"); e("v_lshlrev_b32 v5, 16, v5")
e("v_lshlrev_b32 v1, 2, v1"); e(f"v_add_u32 v1, {GO}, v1")
e("buffer_store_dword v5, v1, s[20:23], 0 offen")
lab("k1_end"); e("s_endpgm")

NG2=160
head("k2_kernel")
e(f"s_cmp_ge_u32 s2, {NG2+1024}"); e("s_cbranch_scc1 k2_end")
srd(20,64,65,WS)
e(f"s_cmp_ge_u32 s2, {NG2}"); e("s_cbranch_scc1 k2_att")
srd(8,64,65,WS); srd(12,56,57,2211840); srd(16,56,57,2211840)
e("s_and_b32 s41, s2, 31"); e("s_lshr_b32 s42, s2, 5")
e("s_mul_i32 s31, s41, 221184"); e(f"s_add_u32 s31, s31, {HO}")
e("s_mov_b32 s30, 1280"); e("s_lshl_b32 s32, s42, 8"); e("s_add_u32 s33, s32, 128")
gemm_core("k2",2,27,3456,3)
def ep_addr(base):
    e("s_lshl_b32 s27, s41, 6"); e("s_lshl_b32 s43, s34, 5"); e("s_add_u32 s27, s27, s43"); e("v_add_u32 v6, s27, v3")
    e("v_mul_u32_u24 v5, 1280, v6"); e("v_lshl_add_u32 v5, v4, 3, v5")
    e("s_lshl_b32 s27, s35, 6"); e("s_add_u32 s27, s27, s32"); e("v_add_u32 v5, s27, v5")
    if base: e(f"v_add_u32 v5, {base}, v5")
ep_addr(BO)
for nb in range(4):
    for mb in range(2):
        d=128+(nb*2+mb)*2; rnd_pack(ACC+(nb*2+mb)*4,d)
        e(f"s_mov_b32 s27, {mb*16*1280+(nb>>1)*128+(nb&1)*32}")
        e(f"buffer_store_dwordx2 v[{d}:{d+1}], v5, s[20:23], s27 offen")
e("s_branch k2_end")
lab("k2_att")
e(f"s_sub_u32 s27, s2, {NG2}"); e("s_and_b32 s41, s27, 31"); e("s_lshr_b32 s42, s27, 5")
e("v_lshrrev_b32 v1, 6, v0"); e("v_and_b32 v2, 63, v0"); e("s_nop 0"); e("v_readfirstlane_b32 s36, v1")
e("s_lshl_b32 s43, s42, 11"); e("s_lshl_b32 s27, s41, 6"); e("s_add_u32 s43, s43, s27")
e("s_mul_i32 s24, s43, 40"); e(f"s_add_u32 s24, s24, {KO-256*40}")
e("v_lshlrev_b32 v3, 4, v2")
for t,off in ((0,0),(1,13312)):
    for j in range(4):
        if j==3: e("s_cmp_lg_u32 s36, 0"); e(f"s_cbranch_scc1 k2_sk{t}")
        e("s_lshl_b32 s27, s36, 10"); e(f"s_add_u32 s27, s27, {j*4096}")
        e(f"s_add_u32 m0, s27, {off}"); e("s_add_u32 s27, s27, s24"); e(f"s_add_u32 s27, s27, {t*2621440}")
        e("buffer_load_dwordx4 v3, s[20:23], s27 offen lds")
    lab(f"k2_sk{t}")
e("v_and_b32 v3, 15, v2"); e("v_lshrrev_b32 v4, 4, v2")
e("s_lshl_b32 s27, s36, 4"); e("s_add_u32 s43, s43, s27")
e("v_add_u32 v5, s43, v3"); e("v_mul_u32_u24 v5, 40, v5"); e("v_lshl_add_u32 v5, v4, 4, v5")
e("buffer_load_dwordx4 v[8:11], v5, s[20:23], 0 offen")
e("s_mul_i32 s27, s36, 640")
e("v_mul_u32_u24 v6, 40, v3"); e("v_lshl_add_u32 v6, v4, 4, v6"); e("v_add_u32 v6, s27, v6")
e("v_lshrrev_b32 v7, 2, v3"); e("v_lshl_add_u32 v7, v4, 2, v7"); e("v_mul_u32_u24 v7, 40, v7")
e("v_and_b32 v12, 3, v3"); e("v_lshl_add_u32 v7, v12, 3, v7"); e("v_add_u32 v7, s27, v7"); e("v_add_u32 v7, 13312, v7")
e("v_cmp_gt_u32 vcc, 3, v4"); e("v_cmp_gt_u32 s[28:29], 2, v4")
e("s_waitcnt vmcnt(0)"); e("s_barrier")
e("v_cndmask_b32 v8, 0, v8, vcc"); e("v_cndmask_b32 v9, 0, v9, vcc")
e("v_cndmask_b32 v10, 0, v10, s[28:29]"); e("v_cndmask_b32 v11, 0, v11, s[28:29]")
S=64
for t in range(17):
    e(f"ds_read_b64 v[{132+4*t}:{133+4*t}], v6 offset:{t*640}"); e(f"ds_read_b64 v[{134+4*t}:{135+4*t}], v6 offset:{t*640+8}")
for t in range(17):
    e(f"s_waitcnt lgkmcnt({min(15,2*(16-t))})")
    e(f"v_mfma_f32_16x16x32_bf16 v[{S+4*t}:{S+3+4*t}], v[{132+4*t}:{135+4*t}], v[8:11], 0")
e("v_lshlrev_b32 v12, 2, v4"); e("v_mov_b32 v13, 0xf149f2ca"); e("s_nop 7")
for r in range(4):
    e(f"v_add_u32 v14, {r}, v12"); e("v_cmp_gt_u32 vcc, v14, v3"); e("s_nop 1")
    e(f"v_cndmask_b32 v{S+r}, v13, v{S+r}, vcc"); e(f"v_cndmask_b32 v{S+64+r}, v{S+64+r}, v13, vcc")
e("s_lshl_b32 s27, s41, 2"); e("s_add_u32 s27, s27, s36")
e("s_cmp_ge_u32 s27, 16"); e("s_cbranch_scc1 k2_nm")
for t in range(16):
    e(f"s_add_u32 s26, s27, {t}"); e("s_cmp_lt_u32 s26, 16"); e("s_cselect_b64 s[28:29], -1, 0")
    for r in range(4): e(f"v_cndmask_b32 v{S+4*t+r}, v{S+4*t+r}, v13, s[28:29]")
lab("k2_nm")
e(f"v_max3_f32 v14, v{S}, v{S+1}, v{S+2}")
for i in range(3,67,2): e(f"v_max3_f32 v14, v14, v{S+i}, v{S+i+1}")
e(f"v_max_f32 v14, v14, v{S+67}")
e("v_xor_b32 v15, 16, v2"); e("v_lshlrev_b32 v15, 2, v15"); e("v_xor_b32 v16, 32, v2"); e("v_lshlrev_b32 v16, 2, v16")
for a in (15,16):
    e(f"ds_bpermute_b32 v17, v{a}, v14"); e("s_waitcnt lgkmcnt(0)"); e("v_max_f32 v14, v14, v17")
e("s_mov_b32 s27, 0x3ea52ba0"); e("v_mul_f32 v14, s27, v14"); e("v_mov_b32 v18, 0")
for i in range(68): e(f"v_fma_f32 v{S+i}, v{S+i}, s27, -v14")
for i in range(68): e(f"v_exp_f32 v{S+i}, v{S+i}")
e("s_nop 0")
for i in range(68): e(f"v_add_f32 v18, v18, v{S+i}")
for t in range(17): rnd_pack(S+4*t,132+2*t)
for a in (15,16):
    e(f"ds_bpermute_b32 v17, v{a}, v18"); e("s_waitcnt lgkmcnt(0)"); e("v_add_f32 v18, v18, v17")
e("v_rcp_f32 v18, v18")
for i in range(8): e(f"v_mov_b32 v{20+i}, 0")
for db in range(2):
    for t in range(17): e(f"ds_read_b64_tr_b16 v[{S+2*t}:{S+1+2*t}], v7 offset:{t*640+db*32}")
    e("s_waitcnt lgkmcnt(0)")
    o=20+4*db
    for t in range(0,16,2): e(f"v_mfma_f32_16x16x32_bf16 v[{o}:{o+3}], v[{S+2*t}:{S+3+2*t}], v[{132+2*t}:{135+2*t}], v[{o}:{o+3}]")
    e("s_nop 7"); e(f"v_mfma_f32_16x16x16_bf16 v[{o}:{o+3}], v[{S+32}:{S+33}], v[164:165], v[{o}:{o+3}]")
    e("s_nop 7")
e("s_nop 7")
for i in range(8): e(f"v_mul_f32 v{20+i}, v{20+i}, v18")
rnd_pack(20,28); rnd_pack(24,30)
e("s_and_b32 s27, s43, 2047"); e("v_add_u32 v5, s27, v3"); e("v_mul_u32_u24 v5, 1280, v5"); e("v_lshl_add_u32 v5, v4, 3, v5")
e("s_mul_i32 s27, s42, 40"); e(f"s_add_u32 s27, s27, {OO}")
e("buffer_store_dwordx2 v[28:29], v5, s[20:23], s27 offen")
e("v_cmp_eq_u32 vcc, 0, v4"); e("s_and_saveexec_b64 s[28:29], vcc")
e("buffer_store_dwordx2 v[30:31], v5, s[20:23], s27 offen offset:32")
lab("k2_end"); e("s_endpgm")

head("k3_kernel")
e("s_cmp_ge_u32 s2, 160"); e("s_cbranch_scc1 k3_end")
srd(20,64,65,WS); srd(68,60,61,2621440)
srd(8,64,65,WS); srd(12,48,49,819200); srd(16,48,49,819200)
e("s_and_b32 s41, s2, 31"); e("s_lshr_b32 s42, s2, 5")
e("s_mul_i32 s31, s41, 81920"); e(f"s_add_u32 s31, s31, {OO}")
e("s_mov_b32 s30, 1280"); e("s_lshl_b32 s32, s42, 8"); e("s_add_u32 s33, s32, 128")
gemm_core("k3",2,10,1280,3)
ep_addr(0)
e(f"v_lshlrev_b32 v6, 2, v6")
for mb in range(2): e(f"buffer_load_dword v{16+mb}, v6, s[20:23], 0 offen offset:{mb*64}" .replace(", 0 offen",f", s27 offen") if False else f"s_mov_b32 s27, {GO}") or e(f"buffer_load_dword v{16+mb}, v6, s[20:23], s27 offen offset:{mb*64}")
for nb in range(4):
    for mb in range(2):
        d=128+(nb*2+mb)*2
        e(f"s_mov_b32 s27, {BO+mb*16*1280+(nb>>1)*128+(nb&1)*32}")
        e(f"buffer_load_dwordx2 v[{d}:{d+1}], v5, s[20:23], s27 offen")
e("s_waitcnt vmcnt(0)")
for mb in range(2):
    e(f"v_sub_f32 v{18+mb}, 1.0, v{16+mb}"); e(f"v_cvt_pk_bf16_f32 v{18+mb}, v{18+mb}, v{18+mb}"); e(f"v_lshlrev_b32 v{18+mb}, 16, v{18+mb}")
for nb in range(4):
    for mb in range(2):
        d=128+(nb*2+mb)*2; a=ACC+(nb*2+mb)*4
        rnd_pack(a,20); unpack(20,24); unpack(d,28)
        for r in range(4): e(f"v_mul_f32 v{24+r}, v{24+r}, v{16+mb}"); e(f"v_mul_f32 v{28+r}, v{28+r}, v{18+mb}")
        rnd_pack(24,20); rnd_pack(28,22); unpack(20,24); unpack(22,28)
        for r in range(4): e(f"v_add_f32 v{24+r}, v{24+r}, v{28+r}")
        rnd_pack(24,d)
        e(f"s_mov_b32 s27, {mb*16*1280+(nb>>1)*128+(nb&1)*32}")
        e(f"buffer_store_dwordx2 v[{d}:{d+1}], v5, s[68:71], s27 offen")
lab("k3_end"); e("s_endpgm")

hdr=f"""; @launch kernel=k1_kernel grid=(704,1,1) block=(256,1,1) lds=65536
; @launch kernel=k2_kernel grid=({NG2+1024},1,1) block=(256,1,1) lds=73728
; @launch kernel=k3_kernel grid=(160,1,1) block=(256,1,1) lds=73728
.amdgcn_target "amdgcn-amd-amdhsa--gfx950"
.text
"""
kd='.section .rodata,"a"\n'
for k in ("k1_kernel","k2_kernel","k3_kernel"):
    kd+=f""".p2align 6
.amdhsa_kernel {k}
  .amdhsa_next_free_vgpr 200
  .amdhsa_next_free_sgpr 80
  .amdhsa_accum_offset 200
  .amdhsa_group_segment_fixed_size 0
  .amdhsa_kernarg_size 88
  .amdhsa_user_sgpr_count 2
  .amdhsa_user_sgpr_kernarg_segment_ptr 1
  .amdhsa_system_sgpr_workgroup_id_x 1
.end_amdhsa_kernel
"""
open(f"cdna_kernels/{NAME}.s","w").write(hdr+"\n".join(L)+"\n"+kd)
```
